```python
import torch

def _softmax(x, axis=-1):
    return torch.softmax(x, dim=axis)
def _gelu(x):
    return torch.nn.functional.gelu(x, approximate="tanh")
def _silu(x):
    return torch.nn.functional.silu(x)
def _sigmoid(x):
    return torch.sigmoid(x)
def _layernorm(x, axis=-1, eps=1e-5):
    m = x.mean(dim=axis, keepdim=True)
    v = x.var(dim=axis, keepdim=True, unbiased=False)
    return (x - m) / torch.sqrt(v + eps)
def _scatter_add(tgt, idx, src, axis=0):
    return tgt.clone().index_add_(axis, idx, src)
def _segment_sum(src, seg, n):
    out = torch.zeros((n,) + src.shape[1:], dtype=src.dtype)
    return out.index_add_(0, seg, src)
def _pad(x, pw):
    flat = tuple(v for pair in reversed(pw) for v in pair)
    return torch.nn.functional.pad(x, flat)

kernel_name = 'recurrent_scan__sliding_block_cached__dense_activation_squared_relu__decode'

def setup_inputs():

    _w = (lambda a: (lambda t: t.to(torch.bfloat16) if t.is_floating_point() else t)(torch.as_tensor(a)))
    def _A_setup():
        B, Sq, D = 1, 1, 640
        Hq, Hkv, Sk, Dh = 32, 32, 32768, 192
        assert Hq % Hkv == 0, (Hq, Hkv)
        return {
            "x": _w((lambda *s: torch.randn(*s, dtype=torch.bfloat16) * 0.05)(B, Sq, D)),
            "k_cache": _w((lambda *s: torch.randn(*s, dtype=torch.bfloat16) * 0.8)(B, Hkv, Sk, Dh)),
            "v_cache": _w((lambda *s: torch.randn(*s, dtype=torch.bfloat16) * 0.2)(B, Hkv, Sk, Dh)),
            "wq": _w((lambda *s: torch.randn(*s, dtype=torch.bfloat16) * 0.8)(D, Hq * Dh) * (D ** -0.5)),
            "wo": _w((lambda *s: torch.randn(*s, dtype=torch.bfloat16) * 0.2)(Hq * Dh, D) * ((Hq * Dh) ** -0.5)),
        }
    _A_in = _A_setup()

    def _B_setup():
        B, S, D, F = 1, 1, 640, 1536
        return {
            "x": _w((lambda *s: torch.randn(*s, dtype=torch.bfloat16) * 0.05)(B, S, D)),
            "w1": _w((lambda *s: torch.randn(*s, dtype=torch.bfloat16) * 0.1)(D, F)),
            "b1": _w((lambda *s: torch.randn(*s, dtype=torch.bfloat16) * 0.1)(F)),
            "w2": _w((lambda *s: torch.randn(*s, dtype=torch.bfloat16) * 0.1)(F, D)),
            "b2": _w((lambda *s: torch.randn(*s, dtype=torch.bfloat16) * 0.1)(D)),
        }
    _B_in = _B_setup()

    return {
        "A_x": _A_in["x"],
        "A_k_cache": _A_in["k_cache"],
        "A_v_cache": _A_in["v_cache"],
        "A_wq": _A_in["wq"],
        "A_wo": _A_in["wo"],
        "B_x": _B_in["x"],
        "B_w1": _B_in["w1"],
        "B_b1": _B_in["b1"],
        "B_w2": _B_in["w2"],
        "B_b2": _B_in["b2"],
    }

def reference(A_x, A_k_cache, A_v_cache, A_wq, A_wo, B_x, B_w1, B_b1, B_w2, B_b2):
    def _A_ref(x, k_cache, v_cache, wq, wo):
        B, Sq, D = x.shape
        Hq, Dh = 32, 192
        Hkv, Sk = k_cache.shape[1], k_cache.shape[2]
        W = min(4096, max(256, Sk // 4))
        rep = Hq // Hkv
        q = (lambda x, *d: x.permute(*d))((x @ wq).reshape(B, Sq, Hq, Dh), 0, 2, 1, 3)
        k = (lambda x, n, axis: torch.repeat_interleave(x, n, dim=axis))(k_cache[:, :, Sk - W:, :], rep, axis=1)
        v = (lambda x, n, axis: torch.repeat_interleave(x, n, dim=axis))(v_cache[:, :, Sk - W:, :], rep, axis=1)
        scores = torch.einsum("bhqd,bhkd->bhqk", q, k) * (Dh ** -0.5)
        p = _softmax(scores, axis=-1)
        o = torch.einsum("bhqk,bhkd->bhqd", p, v)
        return (lambda x, *d: x.permute(*d))(o, 0, 2, 1, 3).reshape(B, Sq, Hq * Dh) @ wo

    def _B_ref(x, w1, b1, w2, b2):
        h = torch.einsum("bsd,df->bsf", x, w1) + b1
        zero = torch.zeros_like(h)
        r = torch.where(h > zero, h, zero)
        h = r * r
        out = torch.einsum("bsf,fd->bsd", h, w2) + b2
        return out

    x = A_x
    xn = _layernorm(x, axis=-1)
    s = _A_ref(xn, A_k_cache, A_v_cache, A_wq, A_wo)
    g = _silu(_B_ref(xn, B_w1, B_b1, B_w2, B_b2))
    return x + s * g
```

```python
import re
TRANS = ("v_exp_f32","v_log_f32","v_rcp_f32","v_rsq_f32","v_sqrt_f32","v_sin_f32","v_cos_f32")
def regs_of(tok, kind):
    tok = tok.strip()
    tok = re.sub(r"^-", "", tok)
    m = re.match(r"^abs\((.*)\)$", tok)
    if m: tok = m.group(1)
    m = re.match(r"^\|(.*)\|$", tok)
    if m: tok = m.group(1)
    m = re.match(rf"^{kind}(\d+)$", tok)
    if m: return [int(m.group(1))]
    m = re.match(rf"^{kind}\[(\d+):(\d+)\]$", tok)
    if m: return list(range(int(m.group(1)), int(m.group(2))+1))
    if kind == "s" and tok == "vcc": return [106, 107]
    return []
class Asm:
    def __init__(self):
        self.lines = []
        self.slot = 0
        self.vw = {}
        self.sw = {}
        self.stw = {}
        self.nops = 0
    def raw(self, t): self.lines.append(t)
    def comment(self, t): self.lines.append("    ; " + t)
    def label(self, name, pad=True):
        self.lines.append(name + ":")
        if pad:
            self.lines.append("    s_nop 4"); self.slot += 5
    def nop(self, n):
        while n > 0:
            k = min(n, 16)
            self.lines.append(f"    s_nop {k-1}"); self.slot += k; n -= k; self.nops += k
    def __call__(self, text):
        t = text.split(";")[0].strip()
        parts = t.split(None, 1)
        op = parts[0]
        rest = parts[1] if len(parts) > 1 else ""
        ops, depth, cur = [], 0, ""
        for ch in rest:
            if ch == "[": depth += 1
            if ch == "]": depth -= 1
            if ch == "," and depth == 0:
                ops.append(cur.strip()); cur = ""
            else: cur += ch
        if cur.strip(): ops.append(cur.strip())
        mods = ""
        if ops:
            last = ops[-1].split(None, 1)
            if len(last) > 1 and not last[0].endswith(":"):
                ops[-1] = last[0]; mods = last[1]
        need = 0
        def req(prod_slot, ws):
            nonlocal need
            d = self.slot - prod_slot - 1
            if d < ws: need = max(need, ws - d)
        base = re.sub(r"_(e32|e64|dpp|sdwa)$", "", op)
        is_valu = op.startswith("v_")
        is_vmem = op.startswith(("global_", "buffer_", "flat_"))
        is_ds = op.startswith("ds_")
        vdst, vsrc, sdst, ssrc = [], [], [], []
        if is_valu:
            dpp = ("dpp" in op) or any(k in mods for k in ("quad_perm", "row_", "wave_"))
            if base.startswith("v_cmp"):
                sdst = regs_of(ops[0], "s"); srcs = ops[1:]
            elif base in ("v_readlane_b32", "v_readfirstlane_b32"):
                sdst = regs_of(ops[0], "s"); srcs = ops[1:]
            elif base.startswith("v_permlane"):
                vdst = regs_of(ops[0], "v") + regs_of(ops[1], "v"); srcs = ops[0:2]
            elif base in ("v_add_co_u32", "v_addc_co_u32", "v_sub_co_u32"):
                vdst = regs_of(ops[0], "v"); sdst = regs_of(ops[1], "s"); srcs = ops[2:]
            else:
                vdst = regs_of(ops[0], "v"); srcs = ops[1:]
                if base in ("v_dot2c_f32_bf16", "v_fmac_f32") or dpp:
                    srcs = srcs + [ops[0]]
            for s in srcs:
                vsrc += regs_of(s, "v"); ssrc += regs_of(s, "s")
            if base == "v_cndmask_b32" and len(ops) == 3: ssrc += [106, 107]
            for r in vsrc + vdst:
                if r in self.vw:
                    ps, kind, pop = self.vw[r]
                    if kind == "dot":
                        if pop == base and r in vdst and r not in sum([regs_of(s, "v") for s in ops[1:3]], []):
                            pass
                        else: req(ps, 3)
                    if kind == "trans" and r in vsrc and base not in TRANS: req(ps, 1)
                    if kind == "trans" and r in vsrc and base in TRANS: req(ps, 1)
            if dpp:
                for r in regs_of(ops[1], "v"):
                    if r in self.vw: req(self.vw[r][0], 2)
            if base.startswith("v_permlane"):
                for r in vsrc:
                    if r in self.vw: req(self.vw[r][0], 2)
            if base in ("v_readlane_b32", "v_readfirstlane_b32"):
                for r in regs_of(ops[1], "v"):
                    if r in self.vw: req(self.vw[r][0], 1)
                if base == "v_readlane_b32":
                    for r in regs_of(ops[2], "s"):
                        if r in self.sw: req(self.sw[r], 4)
            for r in ssrc:
                if r in self.sw: req(self.sw[r], 2)
            for r in vdst:
                if r in self.stw: req(self.stw[r], 2)
        elif is_vmem or is_ds:
            allv, alls = [], []
            for s in ops:
                allv += regs_of(s, "v"); alls += regs_of(s, "s")
            for r in allv:
                if r in self.vw and self.vw[r][1] == "dot": req(self.vw[r][0], 3)
                if r in self.vw and self.vw[r][1] == "trans": req(self.vw[r][0], 1)
                if r in self.stw and ("load" in op or "read" in op): req(self.stw[r], 1)
            for r in alls:
                if r in self.sw: req(self.sw[r], 5)
        else:
            for s in ops:
                for r in regs_of(s, "s"):
                    if r in self.sw: req(self.sw[r], 1)
            if op.startswith("s_cbranch_vcc"):
                for r in (106, 107):
                    if r in self.sw: req(self.sw[r], 1)
        if need: self.nop(need)
        self.lines.append("    " + text)
        if op == "s_nop":
            self.slot += int(ops[0]) + 1
            return
        if is_valu:
            kind = "trans" if base in TRANS else ("dot" if base.startswith("v_dot") else "valu")
            for r in vdst: self.vw[r] = (self.slot, kind, base)
            for r in sdst: self.sw[r] = self.slot
        elif is_vmem and "store" in op and ("x3" in op or "x4" in op):
            data = ops[1] if op.startswith("global") else ops[0]
            for r in regs_of(data, "v"): self.stw[r] = self.slot
        if not is_valu:
            if (is_vmem and "load" in op) or (is_ds and "read" in op):
                for r in regs_of(ops[0], "v"): self.vw.pop(r, None)
            if op.startswith("s_") and ops:
                for r in regs_of(ops[0], "s"):
                    if not op.startswith(("s_cmp", "s_cbranch", "s_waitcnt")): self.sw.pop(r, None)
        self.slot += 1
    def text(self): return "\n".join(self.lines)
```

```python
KN = "recurrent_scan__sliding_block_cached__dense_activation_squared_relu__decode_kernel"
HDR = open("recurrent_scan__sliding_block_cached__dense_activation_squared_relu__decode.s.ref").read().split("; Override launch geometry")[0]

def wrap(body, grid=256, block=512, lds=0, vgpr=256, sgpr=102, accum=None):
    if accum is None:
        accum = min(256, (vgpr + 3) // 4 * 4)
    return f"""{HDR}; @launch grid=({grid},1,1) block=({block},1,1) lds={lds}
.amdgcn_target "amdgcn-amd-amdhsa--gfx950"
.text
.globl {KN}
.p2align 8
.type {KN},@function
{KN}:
{body}
.section .rodata,"a"
.p2align 6
.amdhsa_kernel {KN}
  .amdhsa_next_free_vgpr {vgpr}
  .amdhsa_next_free_sgpr {sgpr}
  .amdhsa_accum_offset {accum}
  .amdhsa_group_segment_fixed_size 0
  .amdhsa_kernarg_size 104
  .amdhsa_user_sgpr_count 2
  .amdhsa_user_sgpr_kernarg_segment_ptr 1
  .amdhsa_system_sgpr_workgroup_id_x 1
  .amdhsa_float_denorm_mode_32 3
.end_amdhsa_kernel
"""
```

```python
import sys
from glib import *
from asmlib import Asm

EPOCH, QREC, OREC, SREC, MREC = 0x0, 0x80000, 0x100000, 0x180000, 0x1C0000
SROW = 7168
L_FLAG, L_Q, L_H, L_ML, L_O, L_S, L_R = 0, 64, 512, 640, 1024, 7168, 11264
RS = 816
LDS_BYTES = 11264 + 8*RS
SPIN = 0x200000
LOG2E = 0x3fb8aa3b
SCALE = 0x3d93cd3a
KB, VB = 64, 160
TAG = 49

def gen(stamps=False, opts=None):
    o = dict(nt=True, qsleep=90, qretry=1, h1sleep=0, fsleep=0, kwin=4, vpre=2, vahead=2, xmap=0, warm=1, fast=1)
    o.update(opts or {})
    NT = " nt" if o["nt"] else ""
    a = Asm()
    def stamp(k):
        if stamps:
            a(f"s_memrealtime s[{64+2*k}:{65+2*k}]")
    def wave_red(op, v):
        for d in ("row_shr:1", "row_shr:2", "row_shr:4", "row_shr:8"):
            a(f"{op}_dpp v{v}, v{v}, v{v} {d} row_mask:0xf bank_mask:0xf")
        a(f"{op}_dpp v{v}, v{v}, v{v} row_bcast:15 row_mask:0xa bank_mask:0xf")
        a(f"{op}_dpp v{v}, v{v}, v{v} row_bcast:31 row_mask:0xc bank_mask:0xf")
    def tree8(groups, dests):
        for G in groups:
            for e in (0, 2, 4, 6):
                a(f"v_add_f32_dpp v{G[e]}, v{G[e]}, v{G[e]} row_shl:8 row_mask:0xf bank_mask:0x3")
        for G in groups:
            for e in (0, 2, 4, 6):
                a(f"v_add_f32_dpp v{G[e]}, v{G[e+1]}, v{G[e+1]} row_shr:8 row_mask:0xf bank_mask:0xc")
        for G in groups:
            for e in (0, 4):
                a(f"v_permlane16_swap_b32 v{G[e]}, v{G[e+2]}")
        for G in groups:
            for e in (0, 4):
                a(f"v_add_f32 v{G[e]}, v{G[e]}, v{G[e+2]}")
        for G in groups:
            a(f"v_permlane32_swap_b32 v{G[0]}, v{G[4]}")
        for G, d in zip(groups, dests):
            a(f"v_add_f32 v{d}, v{G[0]}, v{G[4]}")
    def oct_all(op, regs):
        for d in ("quad_perm:[1,0,3,2]", "quad_perm:[2,3,0,1]", "row_half_mirror"):
            for r in regs:
                a(f"{op}_dpp v{r}, v{r}, v{r} {d} row_mask:0xf bank_mask:0xf")
    def make_tag():
        a("s_waitcnt lgkmcnt(0)")
        a(f"s_mul_i32 s{TAG}, s{TAG}, 0x9E3779B1")
        a(f"s_add_u32 s{TAG}, s{TAG}, 0x7F4A7C15")
    def tagcheck(tags, acc, ok, retry, sleep=0):
        a(f"v_xor_b32 v{acc}, s{TAG}, v{tags[0]}")
        for t in tags[1:]:
            a(f"v_bitop3_b32 v{acc}, v{t}, v{acc}, s{TAG} bitop3:0xde")
        a(f"v_cmp_eq_u32 vcc, 0, v{acc}")
        a("s_cmp_eq_u64 vcc, exec")
        a(f"s_cbranch_scc1 {ok}")
        if sleep: a(f"s_sleep {sleep}")
        a("s_sub_u32 s39, s39, 1")
        a("s_cmp_lg_u32 s39, 0")
        a(f"s_cbranch_scc1 {retry}")
    def recaddr(rec, extra, dst="s36"):
        a(f"s_mul_i32 {dst}, s30, {SROW}")
        if extra:
            a("s_lshl_b32 s38, s51, 10")
            a(f"s_add_u32 {dst}, {dst}, s38")
            a("s_lshl_b32 s38, s50, 9")
            a(f"s_add_u32 {dst}, {dst}, s38")
            a(f"s_add_u32 {dst}, {dst}, {rec+4096}")
        else:
            a("s_lshl_b32 s38, s31, 9")
            a(f"s_add_u32 {dst}, {dst}, s38")
            a(f"s_add_u32 {dst}, {dst}, {rec}")

    if stamps:
        for k in range(16):
            a(f"s_mov_b64 s[{64+2*k}:{65+2*k}], 0")
    stamp(0)
    a("s_load_dwordx16 s[4:19], s[0:1], 0")
    a("s_load_dwordx8 s[20:27], s[0:1], 64")
    a("s_load_dwordx2 s[28:29], s[0:1], 96")
    a("s_cmp_ge_u32 s2, 256")
    a("s_cbranch_scc1 L_end")
    a("v_lshrrev_b32 v7, 6, v0")
    a("v_and_b32 v1, 63, v0")
    a("v_and_b32 v2, 7, v0")
    a("v_readfirstlane_b32 s32, v7")
    a("v_bfe_u32 v3, v0, 3, 3")
    if o["xmap"] == 0:
        a("s_and_b32 s30, s2, 7")
        a("s_lshl_b32 s30, s30, 2")
        a("s_bfe_u32 s33, s2, 0x20003")
        a("s_add_u32 s30, s30, s33")
        a("s_lshr_b32 s31, s2, 5")
    else:
        a("s_lshr_b32 s30, s2, 3")
        a("s_and_b32 s31, s2, 7")
    a("s_lshl_b32 s34, s30, 3")
    a("s_add_u32 s34, s34, s31")
    a("v_mul_u32_u24 v4, 384, v3")
    a("v_lshl_add_u32 v4, v2, 4, v4")
    a("v_add_u32 v4, 4096, v4")
    a("v_add_u32 v5, 9216, v4")
    a("v_add_u32 v6, 18432, v4")
    a("s_mul_i32 s35, s30, 12582912")
    a("s_mul_i32 s36, s31, 196608")
    a("s_add_u32 s35, s35, s36")
    a("s_mul_i32 s36, s32, 24576")
    a("s_add_u32 s35, s35, s36")
    a("s_add_u32 s35, s35, 11010048")
    a("v_lshl_add_u32 v7, v2, 3, v3")
    a("s_min_u32 s36, s31, 5")
    a("s_cmp_ge_u32 s36, 3")
    a("s_cselect_b32 s50, 1, 0")
    a("s_mul_i32 s51, s50, 3")
    a("s_sub_u32 s51, s36, s51")
    a("s_waitcnt lgkmcnt(0)")
    a(f"s_load_dword s{TAG}, s[28:29], {EPOCH}")
    a("s_add_u32 s6, s6, s35")
    a("s_addc_u32 s7, s7, 0")
    a("s_add_u32 s8, s8, s35")
    a("s_addc_u32 s9, s9, 0")
    a("s_cmp_lg_u32 s32, 0")
    a("s_cbranch_scc1 L_notctl")
    a("s_mul_i32 s37, s31, 160")
    a("v_lshlrev_b32 v13, 4, v1")
    a("global_load_dwordx4 v[14:17], v13, s[4:5]")
    a("v_lshlrev_b32 v13, 2, v1")
    a("global_load_dword v18, v13, s[4:5] offset:1024")
    a("v_mul_u32_u24 v13, 20, v3")
    a("v_add_u32 v13, s37, v13")
    a("global_load_dwordx4 v[20:23], v13, s[4:5]")
    a("global_load_dword v24, v13, s[4:5] offset:16")
    a("s_mul_i32 s36, s31, 983040")
    a("s_mul_i32 s38, s30, 384")
    a("s_add_u32 s36, s36, s38")
    a("s_add_u32 s10, s10, s36")
    a("s_addc_u32 s11, s11, 0")
    a("s_mul_i32 s36, s31, 245760")
    a("s_mul_i32 s38, s30, 96")
    a("s_add_u32 s36, s36, s38")
    a("s_add_u32 s16, s16, s36")
    a("s_addc_u32 s17, s17, 0")
    a("v_mul_u32_u24 v25, 122880, v3")
    a("v_lshl_add_u32 v25, v2, 4, v25")
    a("v_min_u32 v26, 5, v2")
    a("v_mul_u32_u24 v27, 30720, v3")
    a("v_lshl_add_u32 v26, v26, 4, v27")
    for g in range(10):
        for t in range(3):
            r = 64 + (g*4+t)*4
            a(f"global_load_dwordx4 v[{r}:{r+3}], v25, s[10:11] offset:{128*t}{NT}")
        r = 64 + (g*4+3)*4
        a(f"global_load_dwordx4 v[{r}:{r+3}], v26, s[16:17]{NT}")
        if g < 9:
            a("s_add_u32 s10, s10, 12288")
            a("s_addc_u32 s11, s11, 0")
            a("s_add_u32 s16, s16, 3072")
            a("s_addc_u32 s17, s17, 0")
    a("s_barrier")
    a("s_branch L_ctl2")
    a.label("L_notctl", pad=False)
    a("s_cmp_eq_u32 s32, 7")
    a("s_cbranch_scc1 L_poll")
    make_tag()
    a("s_barrier")
    def kvload(base, sb, g, t):
        r = base + (g*3+t)*4
        a(f"global_load_dwordx4 v[{r}:{r+3}], v{4+g//3}, s[{sb}:{sb+1}] offset:{(g%3)*3072+128*t-4096}{NT}")
    def kissue(win):
        stamp(2)
        n = 0
        for g in range(8):
            for t in range(3):
                if win and n >= win: a(f"s_waitcnt vmcnt({win-1})")
                kvload(KB, 6, g, t); n += 1
    a.label("L_stream", pad=False)
    kissue(o["kwin"])
    a.label("L_stream2", pad=False)
    VPRE = o["vpre"]
    for g in range(VPRE):
        for t in range(3): kvload(VB, 8, g, t)
    stamp(3)
    for r in range(32, 64):
        a(f"v_mov_b32 v{r}, 0")
    a("s_mov_b32 s42, 0xaaaaaaaa"); a("s_mov_b32 s43, 0xaaaaaaaa")
    a("s_mov_b32 s44, 0xcccccccc"); a("s_mov_b32 s45, 0xcccccccc")
    a(f"s_mov_b32 s39, {SPIN}")
    a("v_mov_b32 v31, 0")
    a.label("L_wq")
    a(f"ds_read_b32 v8, v31 offset:{L_FLAG}")
    a("s_waitcnt lgkmcnt(0)")
    a("v_readfirstlane_b32 s52, v8")
    a("s_cmp_lg_u32 s52, 0")
    a("s_cbranch_scc1 L_gotq")
    a("s_sleep 2")
    a("s_sub_u32 s39, s39, 1")
    a("s_cmp_lg_u32 s39, 0")
    a("s_cbranch_scc1 L_wq")
    a.label("L_gotq", pad=False)
    stamp(4)
    a("v_lshlrev_b32 v31, 4, v2")
    for t in range(3):
        a(f"ds_read_b128 v[{8+4*t}:{11+4*t}], v31 offset:{L_Q+128*t}")
    a("s_waitcnt lgkmcnt(0)")
    for g in range(8):
        a(f"s_waitcnt vmcnt({24-3*(g+1)+3*VPRE})")
        for t in range(3):
            for i in range(4):
                a(f"v_dot2c_f32_bf16 v{32+g}, v{8+4*t+i}, v{KB+(g*3+t)*4+i}")
    stamp(5)
    for g in range(4):
        a(f"v_add_f32_dpp v{32+g}, v{32+g}, v{32+g} row_shl:4 row_mask:0xf bank_mask:0x5")
    for g in range(4):
        a(f"v_add_f32_dpp v{32+g}, v{36+g}, v{36+g} row_shr:4 row_mask:0xf bank_mask:0xa")
    for g in range(4):
        a(f"v_add_f32_dpp v{32+g}, v{32+g}, v{32+g} quad_perm:[2,3,0,1] row_mask:0xf bank_mask:0xf")
    a("v_cndmask_b32 v32, v32, v34, s[44:45]")
    a("v_cndmask_b32 v33, v33, v35, s[44:45]")
    a("v_add_f32_dpp v32, v32, v32 quad_perm:[1,0,3,2] row_mask:0xf bank_mask:0xf")
    a("v_add_f32_dpp v33, v33, v33 quad_perm:[1,0,3,2] row_mask:0xf bank_mask:0xf")
    a("v_cndmask_b32 v32, v32, v33, s[42:43]")
    a("v_cvt_pk_bf16_f32 v32, 0, v32")
    a(f"v_mul_f32 v32, {hex(SCALE)}, v32")
    a("v_cvt_pk_bf16_f32 v32, 0, v32")
    a(f"v_mul_f32 v32, {hex(LOG2E)}, v32")
    a("v_mov_b32 v33, v32")
    wave_red("v_max_f32", 33)
    a("v_readlane_b32 s46, v33, 63")
    a("v_subrev_f32 v32, s46, v32")
    a("v_exp_f32 v32, v32")
    a("v_mov_b32 v33, v32")
    a("v_cvt_pk_bf16_f32 v34, 0, v32")
    PH = list(range(8, 16)); PL = [16,17,18,19,20,21,22,23]
    for g in range(8):
        a(f"v_mov_b32_dpp v{PH[g]}, v34 row_newbcast:{g} row_mask:0xf bank_mask:0x3")
        a(f"v_mov_b32_dpp v{PH[g]}, v34 row_newbcast:{8+g} row_mask:0xf bank_mask:0xc")
    for g in range(8):
        a(f"v_lshrrev_b32 v{PL[g]}, 16, v{PH[g]}")
    WO = 96
    queue = [("v", g, t) for g in range(VPRE) for t in range(3)]
    pend = [("v", g, t) for g in range(VPRE, 8) for t in range(3)] + [("w", 8, r) for r in range(3)]
    def h1loads(b=64):
        a(f"global_load_dwordx4 v[{b}:{b+3}], v28, s[28:29] sc1")
        a(f"global_load_dwordx4 v[{b+4}:{b+7}], v29, s[28:29] offset:1024 sc1")
    def issue(op):
        k, x, t = op
        if k == "v": kvload(VB, 8, x, t)
        else:
            a(f"global_load_dwordx4 v[{WO+4*t}:{WO+4*t+3}], v24, s[12:13] offset:{1280*t}{NT}")
        queue.append(op)
    for g in range(8):
        want = g + o["vahead"]
        while pend and pend[0][1] <= want:
            issue(pend.pop(0))
        if g == 0:
            wave_red("v_add_f32", 33)
            a("s_mul_i32 s36, s30, 245760")
            a("s_mul_i32 s38, s32, 30720")
            a("s_add_u32 s36, s36, s38")
            a("v_mul_u32_u24 v24, 3840, v3")
            a("v_lshl_add_u32 v24, v2, 4, v24")
            a("v_add_u32 v24, s36, v24")
            a("s_mul_i32 s36, s51, 1280")
            a("s_lshl_b32 s38, s50, 7")
            a("s_add_u32 s36, s36, s38")
            a("s_add_u32 s36, s36, 1024")
            a("v_add_u32 v25, s36, v24")
            a("s_lshl_b32 s38, s31, 7")
            a("v_add_u32 v24, s38, v24")
            a("v_readlane_b32 s47, v33, 63")
            a("v_mov_b32 v26, s46"); a("v_mov_b32 v27, s47")
            a("s_lshl_b32 s36, s32, 3")
            a("v_mov_b32 v30, s36")
            a(f"ds_write_b64 v30, v[26:27] offset:{L_ML}")
            a("s_mul_i32 s36, s32, 768")
            a("v_lshl_add_u32 v31, v7, 2, s36")
            a("s_lshl_b32 s48, s34, 11")
            a("s_lshl_b32 s36, s30, 14")
            a("s_lshl_b32 s38, s32, 11")
            a("s_add_u32 s36, s36, s38")
            a(f"s_add_u32 s36, s36, {OREC}")
            a("v_lshl_add_u32 v28, v1, 4, s36")
            a("v_min_u32 v30, 32, v1")
            a("v_lshl_add_u32 v29, v30, 4, s36")
            a(f"s_mul_i32 s36, s32, {RS}")
            a(f"s_add_u32 s36, s36, {L_R}")
            a("v_lshl_add_u32 v72, v1, 3, s36")
            a("v_lshl_add_u32 v73, v30, 3, s36")
            a(f"v_mul_u32_u24 v74, {RS}, v2")
            a("v_mul_u32_u24 v75, 12, v3")
            a("s_mul_i32 s36, s32, 96")
            a("v_add3_u32 v75, v75, v74, s36")
            a("s_cmp_eq_u32 s51, 1")
            a("s_cselect_b64 s[54:55], -1, 0")
            a("s_cmp_eq_u32 s51, 2")
            a("s_cselect_b64 s[56:57], -1, 0")
            a("s_lshl_b32 s36, s32, 9")
            a("v_lshl_add_u32 v76, v7, 2, s36")
            for r in range(112, 128):
                a(f"v_mov_b32 v{r}, 0")
            if o["warm"]:
                h1loads(); queue += [("x", 0, 0), ("x", 0, 1)]
        last = max(i for i, q in enumerate(queue) if q[0] == "v" and q[1] == g)
        a(f"s_waitcnt vmcnt({len(queue)-1-last})")
        if g == 7:
            while pend: issue(pend.pop(0))
            a("s_cmp_ge_u32 s31, 6")
            a("s_cbranch_scc1 L_noex")
            a(f"global_load_dwordx4 v[{WO+12}:{WO+15}], v25, s[12:13]{NT}")
            a.label("L_noex", pad=False)
        for t in range(3):
            for i in range(4):
                r = VB+(g*3+t)*4+i
                a(f"v_dot2c_f32_bf16 v{40+8*t+2*i}, v{PL[g]}, v{r}")
                a(f"v_dot2c_f32_bf16 v{41+8*t+2*i}, v{PH[g]}, v{r}")
    stamp(6)
    tree8([list(range(40+8*t, 48+8*t)) for t in range(3)], [40, 48, 56])
    for t in range(3):
        a(f"ds_write_b32 v31, v{40+8*t} offset:{L_O+256*t}")
    a("s_cmp_eq_u32 s32, 7")
    a("s_cbranch_scc1 L_gate")
    a.label("L_b2", pad=False)
    a("s_waitcnt lgkmcnt(0)")
    a("s_barrier")
    stamp(7)
    if o.get("notail"): a("s_branch L_done")
    a("s_cmp_ge_u32 s32, 4")
    a("s_cbranch_scc1 L_hop1")
    a("v_mov_b32 v31, 0")
    for k in range(4):
        a(f"ds_read_b128 v[{8+4*k}:{11+4*k}], v31 offset:{L_ML+16*k}")
    a("v_min_u32 v30, 191, v0")
    a("v_lshlrev_b32 v30, 2, v30")
    for k in range(4):
        a(f"ds_read2st64_b32 v[{32+2*k}:{33+2*k}], v30 offset0:{L_O//256+6*k} offset1:{L_O//256+6*k+3}")
    a(f"s_add_u32 s36, s48, {OREC}")
    a("v_lshl_add_u32 v30, v30, 1, s36")
    a("s_waitcnt lgkmcnt(0)")
    a("v_max3_f32 v24, v8, v10, v12")
    a("v_max3_f32 v25, v14, v16, v18")
    a("v_max3_f32 v24, v24, v20, v22")
    a("v_max_f32 v24, v24, v25")
    for k in range(8):
        a(f"v_sub_f32 v{8+2*k}, v{8+2*k}, v24")
    for k in range(8):
        a(f"v_exp_f32 v{8+2*k}, v{8+2*k}")
    a("s_cmp_eq_u32 s32, 3")
    a("s_cbranch_scc1 L_mlpub")
    a("v_mul_f32 v26, v8, v32")
    a("v_mul_f32 v27, v10, v33")
    for k in range(2, 8):
        a(f"v_fmac_f32 v{26+(k&1)}, v{8+2*k}, v{32+k}")
    a("v_add_f32 v26, v26, v27")
    a(f"v_mov_b32 v27, s{TAG}")
    a("s_cmp_eq_u32 s52, 2")
    a("s_cbranch_scc0 L_opub_far")
    a("global_store_dwordx2 v30, v[26:27], s[28:29]")
    a("s_branch L_hop1")
    a.label("L_opub_far", pad=False)
    a("global_store_dwordx2 v30, v[26:27], s[28:29] sc1")
    a("s_branch L_hop1")
    a.label("L_mlpub")
    a("v_mul_f32 v26, v8, v9")
    a("v_mul_f32 v27, v10, v11")
    for k in range(2, 8):
        a(f"v_fmac_f32 v{26+(k&1)}, v{8+2*k}, v{9+2*k}")
    a("v_add_f32 v26, v26, v27")
    a(f"v_mov_b32 v25, s{TAG}")
    a(f"v_mov_b32 v27, s{TAG}")
    a(f"s_add_u32 s36, s48, {OREC+1536}")
    a("v_lshl_add_u32 v30, v1, 4, s36")
    a("s_mov_b64 exec, 0xff")
    a("s_cmp_eq_u32 s52, 2")
    a("s_cbranch_scc0 L_mlpub_far")
    a("global_store_dwordx4 v30, v[24:27], s[28:29]")
    a("s_branch L_mlpub_done")
    a.label("L_mlpub_far", pad=False)
    a("global_store_dwordx4 v30, v[24:27], s[28:29] sc1")
    a.label("L_mlpub_done", pad=False)
    a("s_mov_b64 exec, -1")
    a.label("L_hop1", pad=False)
    stamp(8)
    a(f"s_mov_b32 s39, {SPIN}")
    a.label("L_h1", pad=False)
    h1loads()
    a("s_waitcnt vmcnt(0)")
    tagcheck([65, 67, 69, 71], 20, "L_h1ok", "L_h1", o["h1sleep"])
    a.label("L_h1ok", pad=False)
    a(f"ds_write2_b32 v72, v64, v66 offset0:0 offset1:1".replace("v72,", "v72,"))
    a(f"ds_write2_b32 v73, v68, v70 offset0:128 offset1:129")
    stamp(9)
    a("s_waitcnt lgkmcnt(0)")
    a("s_barrier")
    a(f"ds_read_b64 v[16:17], v74 offset:{L_R+768}")
    a(f"ds_read_b32 v8, v75 offset:{L_R}")
    a(f"ds_read_b32 v10, v75 offset:{L_R+4}")
    a(f"ds_read_b32 v12, v75 offset:{L_R+8}")
    a("s_waitcnt lgkmcnt(3)" if not stamps else "s_waitcnt lgkmcnt(0)")
    a("v_max_f32_dpp v20, v16, v16 quad_perm:[1,0,3,2] row_mask:0xf bank_mask:0xf")
    a("v_max_f32_dpp v20, v20, v20 quad_perm:[2,3,0,1] row_mask:0xf bank_mask:0xf")
    a("v_max_f32_dpp v20, v20, v20 row_half_mirror row_mask:0xf bank_mask:0xf")
    a("v_sub_f32 v16, v16, v20")
    a("v_exp_f32 v16, v16")
    a("s_waitcnt lgkmcnt(0)")
    for r in (17, 8, 10, 12):
        a(f"v_mul_f32 v{r}, v{r}, v16")
    oct_all("v_add_f32", [17, 8, 10, 12])
    a("v_rcp_f32 v17, v17")
    for r in (8, 10, 12):
        a(f"v_mul_f32 v{r}, v{r}, v17")
    a("v_cndmask_b32 v14, v8, v10, s[54:55]")
    a("v_cndmask_b32 v14, v14, v12, s[56:57]")
    for r in (8, 10, 12, 14):
        a(f"v_cvt_pk_bf16_f32 v{r+1}, v{r}, 0")
        a(f"v_cvt_pk_bf16_f32 v{r}, 0, v{r}")
    for g in range(3):
        for i in range(4):
            a(f"v_dot2c_f32_bf16 v{112+2*i}, v{9+2*g}, v{WO+4*g+i}")
            a(f"v_dot2c_f32_bf16 v{113+2*i}, v{8+2*g}, v{WO+4*g+i}")
    for i in range(4):
        a(f"v_dot2c_f32_bf16 v{120+2*i}, v15, v{WO+12+i}")
        a(f"v_dot2c_f32_bf16 v{121+2*i}, v14, v{WO+12+i}")
    tree8([list(range(112, 120)), list(range(120, 128))], [112, 120])
    a(f"ds_write2st64_b32 v76, v112, v120 offset0:{L_S//256} offset1:{L_S//256+1}")
    a("s_waitcnt lgkmcnt(0)")
    a("s_barrier")
    stamp(10)
    a("s_cmp_eq_u32 s32, 7")
    a("s_cbranch_scc1 L_final")
    a("s_cmp_eq_u32 s32, 1")
    a("s_cbranch_scc1 L_spubx")
    a("s_cmp_lg_u32 s32, 0")
    a("s_cbranch_scc1 L_done")
    def pub64(offs, rec, extra):
        a("v_lshlrev_b32 v30, 2, v1")
        prs = [offs[i:i+2] for i in range(0, len(offs), 2)]
        for k, (x, y) in enumerate(prs):
            a(f"ds_read2st64_b32 v[{32+2*k}:{33+2*k}], v30 offset0:{x//256} offset1:{y//256}")
        recaddr(rec, extra)
        a("v_lshl_add_u32 v30, v1, 3, s36")
        a("s_waitcnt lgkmcnt(0)")
        regs = list(range(32, 32+len(offs)))
        while len(regs) > 1:
            nxt = []
            for i in range(0, len(regs)-1, 2):
                a(f"v_add_f32 v{regs[i]}, v{regs[i]}, v{regs[i+1]}"); nxt.append(regs[i])
            if len(regs) % 2: nxt.append(regs[-1])
            regs = nxt
        a(f"v_mov_b32 v33, s{TAG}")
        a("global_store_dwordx2 v30, v[32:33], s[28:29] sc1")
    pub64([L_S+512*k for k in range(8)], SREC, False)
    a("s_branch L_done")
    a.label("L_spubx", pad=False)
    a("s_cmp_ge_u32 s31, 6")
    a("s_cbranch_scc1 L_done")
    pub64([L_S+512*k+256 for k in range(8)], SREC, True)
    a("s_branch L_done")
    def red2(b):
        a(f"v_add_f32 v{b+4}, v{b+4}, v{b+8}")
        a(f"v_add_f32 v{b+6}, v{b+6}, v{b+10}")
        a(f"v_add_f32 v{b}, v{b}, v{b+4}")
        a(f"v_add_f32 v{b+2}, v{b+2}, v{b+6}")
        a(f"v_add_f32_dpp v{b}, v{b}, v{b} row_shl:4 row_mask:0xf bank_mask:0x5")
        a(f"v_add_f32_dpp v{b}, v{b+2}, v{b+2} row_shr:4 row_mask:0xf bank_mask:0xa")
        a(f"v_add_f32_dpp v{b}, v{b}, v{b} row_ror:8 row_mask:0xf bank_mask:0xf")
        a(f"v_add_f32_dpp v{b}, v{b}, v{b} quad_perm:[2,3,0,1] row_mask:0xf bank_mask:0xf")
        a(f"v_mov_b32 v{b+1}, v{b}")
        a(f"v_permlane16_swap_b32 v{b}, v{b+1}")
        a(f"v_add_f32 v{b}, v{b}, v{b+1}")
        a(f"v_mov_b32 v{b+1}, v{b}")
        a(f"v_permlane32_swap_b32 v{b}, v{b+1}")
        a(f"v_add_f32 v{b}, v{b}, v{b+1}")
    def preset(b):
        for r in range(b+4, b+12, 2):
            a(f"v_mov_b32 v{r}, 0")
            a(f"v_mov_b32 v{r+1}, s{TAG}")
    def pollx4(name, b, addr, acc):
        a(f"s_mov_b32 s39, {SPIN}")
        a.label(name, pad=False)
        a(f"global_load_dwordx4 v[{b}:{b+3}], v{addr}, s[28:29] sc1")
        a("s_cmp_lt_u32 s2, 128")
        a(f"s_cbranch_scc1 {name}w")
        a(f"global_load_dwordx4 v[{b+4}:{b+7}], v{addr}, s[28:29] offset:1024 sc1")
        a(f"global_load_dwordx4 v[{b+8}:{b+11}], v{addr}, s[28:29] offset:2048 sc1")
        a.label(name + "w", pad=False)
        a("s_waitcnt vmcnt(0)")
        tagcheck(list(range(b+1, b+12, 2)), acc, name + "ok", name, o["fsleep"])
        a.label(name + "ok", pad=False)
    a.label("L_final", pad=False)
    a("s_cmp_ge_u32 s2, 160")
    a("s_cbranch_scc1 L_done")
    pollx4("L_ps", 144, 129, 14)
    stamp(12)
    red2(144)
    a("v_cvt_pk_bf16_f32 v16, 0, v144")
    a("v_mul_f32 v16, v16, v131")
    a("v_cvt_pk_bf16_f32 v16, 0, v16")
    a("v_add_f32 v16, v130, v16")
    a("v_cvt_pk_bf16_f32 v16, v16, v16")
    a("s_mov_b64 exec, 0x33")
    a("global_store_short v128, v16, s[24:25]")
    a("s_cmp_lg_u32 s2, 0")
    a("s_cbranch_scc1 L_done2")
    a("s_mov_b64 exec, 1")
    a(f"v_mov_b32 v16, {EPOCH}")
    a(f"v_mov_b32 v17, s{TAG}")
    a("global_store_dword v16, v17, s[28:29]")
    a.label("L_done2", pad=False)
    a("s_mov_b64 exec, -1")
    a.label("L_done", pad=False)
    if stamps:
        a("s_waitcnt vmcnt(0)")
        stamp(1)
        a("s_lshl_b32 s36, s2, 3")
        a("s_add_u32 s36, s36, s32")
        a("s_lshl_b32 s36, s36, 7")
        a("s_add_u32 s36, s36, 0x4000000")
        a("v_mov_b32 v0, s36")
        a("s_waitcnt lgkmcnt(0)")
        a("s_mov_b64 exec, 1")
        for k in range(16):
            a(f"v_mov_b32 v{2+2*k}, s{64+2*k}")
            a(f"v_mov_b32 v{3+2*k}, s{65+2*k}")
            a(f"global_store_dwordx2 v0, v[{2+2*k}:{3+2*k}], s[28:29] offset:{8*k}")
    a.label("L_end", pad=False)
    a("s_endpgm")
    a.label("L_gate")
    if o.get("nogate"): a("s_branch L_b2")
    a("s_cmp_ge_u32 s2, 160")
    a("s_cbranch_scc1 L_b2")
    a("v_lshrrev_b32 v129, 1, v1")
    a(f"v_mul_u32_u24 v129, {SROW}, v129")
    a("v_and_b32 v30, 1, v1")
    a("v_lshl_add_u32 v129, v30, 4, v129")
    a("s_lshl_b32 s36, s2, 5")
    a(f"s_add_u32 s36, s36, {SREC}")
    a("v_add_u32 v129, s36, v129")
    a(f"v_add_u32 v27, {MREC-SREC}, v129")
    a("v_bfe_u32 v128, v1, 2, 1")
    a("v_lshl_add_u32 v128, v30, 1, v128")
    a("s_lshl_b32 s36, s2, 2")
    a("v_add_u32 v128, s36, v128")
    a("v_lshlrev_b32 v128, 1, v128")
    a("global_load_ushort v130, v128, s[4:5]")
    a("global_load_ushort v26, v128, s[22:23]")
    preset(132); preset(144)
    pollx4("L_pm", 132, 27, 14)
    red2(132)
    a("v_lshlrev_b32 v26, 16, v26")
    a("v_lshlrev_b32 v130, 16, v130")
    a("v_cvt_pk_bf16_f32 v8, 0, v132")
    a("v_add_f32 v8, v8, v26")
    a("v_cvt_pk_bf16_f32 v8, 0, v8")
    a(f"v_mul_f32 v9, {hex(LOG2E | 0x80000000)}, v8")
    a("v_exp_f32 v9, v9")
    a("v_add_f32 v9, 1.0, v9")
    a("v_rcp_f32 v9, v9")
    a("v_mul_f32 v8, v8, v9")
    a("v_cvt_pk_bf16_f32 v131, 0, v8")
    stamp(11)
    a("s_branch L_b2")
    a.label("L_ctl2")
    make_tag()
    a("s_getreg_b32 s53, hwreg(HW_REG_XCC_ID)")
    a("s_and_b32 s53, s53, 7")
    a("s_lshl_b32 s53, s53, 25")
    a("s_add_u32 s53, s53, 0x3f800000")
    a("s_waitcnt vmcnt(40)")
    stamp(13)
    E = list(range(44, 54))
    for i in range(5):
        a(f"v_lshlrev_b32 v{E[2*i]}, 16, v{14+i}")
        a(f"v_and_b32 v{E[2*i+1]}, 0xffff0000, v{14+i}")
    a(f"v_add_f32 v8, v{E[0]}, v{E[1]}")
    a(f"v_add_f32 v9, v{E[2]}, v{E[3]}")
    for i in range(4, 10):
        a(f"v_add_f32 v{8+(i&1)}, v{8+(i&1)}, v{E[i]}")
    a("v_add_f32 v8, v8, v9")
    wave_red("v_add_f32", 8)
    a("v_readlane_b32 s36, v8, 63")
    a("v_mov_b32 v10, 0x3acccccd")
    a("v_mul_f32 v11, s36, v10")
    for i in range(10):
        a(f"v_sub_f32 v{E[i]}, v{E[i]}, v11")
    a(f"v_mul_f32 v8, v{E[0]}, v{E[0]}")
    a(f"v_mul_f32 v9, v{E[1]}, v{E[1]}")
    for i in range(2, 10):
        a(f"v_fmac_f32 v{8+(i&1)}, v{E[i]}, v{E[i]}")
    a("v_add_f32 v8, v8, v9")
    wave_red("v_add_f32", 8)
    a("v_readlane_b32 s36, v8, 63")
    a("v_mul_f32 v12, s36, v10")
    a("v_cvt_pk_bf16_f32 v11, 0, v11")
    a("v_cvt_pk_bf16_f32 v12, 0, v12")
    a("v_add_f32 v12, 0x3727c5ac, v12")
    a("v_cvt_pk_bf16_f32 v12, 0, v12")
    a("v_sqrt_f32 v12, v12")
    a("v_cvt_pk_bf16_f32 v12, 0, v12")
    a("v_rcp_f32 v13, v12")
    for i in range(5):
        a(f"v_lshlrev_b32 v{E[2*i]}, 16, v{20+i}")
        a(f"v_and_b32 v{E[2*i+1]}, 0xffff0000, v{20+i}")
    for i in range(10):
        a(f"v_sub_f32 v{E[i]}, v{E[i]}, v11")
    for i in range(10):
        a(f"v_cvt_pk_bf16_f32 v{E[i]}, 0, v{E[i]}")
    for i in range(10):
        a(f"v_mul_f32 v{224+i}, v{E[i]}, v13")
    for i in range(10):
        a(f"v_fma_f32 v{E[i]}, -v{224+i}, v12, v{E[i]}")
    for i in range(10):
        a(f"v_fmac_f32 v{224+i}, v{E[i]}, v13")
    for i in range(10):
        a(f"v_cvt_pk_bf16_f32 v{234+i}, v{224+i}, 0")
        a(f"v_cvt_pk_bf16_f32 v{224+i}, 0, v{224+i}")
    for r in range(32, 64):
        a(f"v_mov_b32 v{r}, 0")
    for r in (9, 11, 13, 15):
        a(f"v_mov_b32 v{r}, s{TAG}")
    a("v_mov_b32 v17, s53")
    a("v_cmp_eq_u32 vcc, 7, v2")
    for g in range(10):
        a(f"s_waitcnt vmcnt({40-4*(g+1)})")
        for t in range(4):
            for i in range(4):
                r = 64+(g*4+t)*4+i
                a(f"v_dot2c_f32_bf16 v{32+8*t+2*i}, v{234+g}, v{r}")
                a(f"v_dot2c_f32_bf16 v{33+8*t+2*i}, v{224+g}, v{r}")
    stamp(15)
    tree8([list(range(32+8*t, 40+8*t)) for t in range(4)], [8, 10, 12, 14])
    a("v_cndmask_b32 v14, v14, v17, vcc")
    a("s_lshl_b32 s36, s34, 11")
    a(f"s_add_u32 s36, s36, {QREC}")
    a("v_lshl_add_u32 v16, v1, 4, s36")
    if not o.get("noq"):
        QF = o.get("qst", "sc1")
        a(f"global_store_dwordx4 v16, v[8:11], s[28:29] {QF}")
        a(f"global_store_dwordx4 v16, v[12:15], s[28:29] offset:1024 {QF}")
    stamp(14)
    a("s_nop 2")
    if o.get("w0win") is not None:
        kissue(o["w0win"])
        a("s_branch L_stream2")
    else:
        a("s_branch L_stream")
    a.label("L_poll")
    a("v_mov_b32 v8, 0")
    a(f"ds_write_b32 v8, v8 offset:{L_FLAG}")
    a("v_min_u32 v9, 5, v2")
    a("v_lshl_add_u32 v9, v9, 3, v3")
    a("s_mul_i32 s36, s30, 96")
    a("v_lshl_add_u32 v9, v9, 1, s36")
    make_tag()
    a("s_barrier")
    a("s_setprio 3")
    a("global_load_ushort v28, v9, s[18:19]")
    a("s_mul_i32 s36, s30, 61440")
    a("v_mul_u32_u24 v31, 1280, v3")
    a("v_lshl_add_u32 v31, v2, 4, v31")
    a("v_add_u32 v31, s36, v31")
    a("s_lshl_b32 s38, s31, 7")
    a("v_add_u32 v30, s38, v31")
    for g in range(6):
        if g: a("v_add_u32 v30, 10240, v30")
        a(f"global_load_dwordx4 v[{160+4*g}:{163+4*g}], v30, s[20:21]{NT}")
    a("s_mul_i32 s36, s51, 20480")
    a("s_lshl_b32 s38, s50, 7")
    a("s_add_u32 s36, s36, s38")
    a("s_add_u32 s36, s36, 1024")
    a("v_add_u32 v30, s36, v31")
    a(f"global_load_dwordx4 v[184:187], v30, s[20:21]{NT}")
    a("v_add_u32 v30, 10240, v30")
    a(f"global_load_dwordx4 v[188:191], v30, s[20:21]{NT}")
    a("s_getreg_b32 s53, hwreg(HW_REG_XCC_ID)")
    a("s_and_b32 s53, s53, 7")
    a("s_lshl_b32 s53, s53, 25")
    a("s_add_u32 s53, s53, 0x41000000")
    for r in range(32, 48):
        a(f"v_mov_b32 v{r}, 0")
    a("s_lshl_b32 s36, s30, 14")
    a(f"s_add_u32 s36, s36, {QREC+4096}")
    a("v_lshl_add_u32 v9, v1, 4, s36")
    a("v_add_u32 v10, 8192, v9")
    a(f"s_mov_b32 s39, {SPIN}")
    n = o["qsleep"]
    while n > 0:
        a(f"s_sleep {min(n,127)}"); n -= 127
    stamp(13)
    if o.get("noq") or o.get("noqg"): a("s_branch L_pqok")
    a.label("L_pq")
    for jp in range(8):
        for hf in range(2):
            r = 64+8*jp+4*hf
            a(f"global_load_dwordx4 v[{r}:{r+3}], v{9+jp//4}, s[28:29] offset:{(jp%4)*2048+hf*1024-4096} sc1")
    a("s_waitcnt vmcnt(0)")
    tagcheck(list(range(65, 128, 2)), 8, "L_pqok", "L_pq", o["qretry"])
    a.label("L_pqok", pad=False)
    stamp(14)
    for lvl in (1, 2, 4):
        for jp in range(0, 8, 2*lvl):
            for t in range(4):
                a(f"v_add_f32 v{64+8*jp+2*t}, v{64+8*jp+2*t}, v{64+8*(jp+lvl)+2*t}")
    a("v_lshlrev_b32 v9, 1, v7")
    for t in range(3):
        a(f"v_cvt_pk_bf16_f32 v{64+2*t}, v{64+2*t}, v{64+2*t}")
        a(f"ds_write_b16 v9, v{64+2*t} offset:{L_Q+128*t}")
    a("v_readlane_b32 s36, v70, 7")
    a("s_cmp_eq_u32 s36, s53")
    a(f"s_cselect_b32 s36, {2 if o['fast'] else 1}, 1")
    a("v_mov_b32 v8, 0")
    a("v_mov_b32 v10, s36")
    a("s_waitcnt lgkmcnt(0)")
    a(f"ds_write_b32 v8, v10 offset:{L_FLAG}")
    a("s_setprio 0")
    a("v_lshlrev_b32 v28, 16, v28")
    a("v_cvt_pk_bf16_f32 v70, 0, v70")
    a("v_add_f32 v70, v70, v28")
    a("v_cvt_pk_bf16_f32 v70, 0, v70")
    a("v_max_f32 v70, 0, v70")
    a("v_mul_f32 v70, v70, v70")
    a("v_cvt_pk_bf16_f32 v70, v70, v70")
    a(f"ds_write_b16 v9, v70 offset:{L_H}")
    a("v_lshlrev_b32 v9, 1, v3")
    a("s_lshl_b32 s36, s51, 5")
    a("v_add_u32 v10, s36, v9")
    a("s_waitcnt lgkmcnt(0)")
    for g in range(6):
        a(f"ds_read_u16 v{12+g}, v9 offset:{L_H+16*g}")
    a(f"ds_read_u16 v18, v10 offset:{L_H}")
    a(f"ds_read_u16 v19, v10 offset:{L_H+16}")
    kissue(0)
    a("s_waitcnt lgkmcnt(0)")
    for g in range(8):
        a(f"v_lshlrev_b32 v{20+g}, 16, v{12+g}")
    for g in range(8):
        acc = 32 if g < 6 else 40
        for i in range(4):
            a(f"v_dot2c_f32_bf16 v{acc+2*i}, v{12+g}, v{160+4*g+i}")
            a(f"v_dot2c_f32_bf16 v{acc+1+2*i}, v{20+g}, v{160+4*g+i}")
    tree8([list(range(32, 40)), list(range(40, 48))], [8, 10])
    a(f"v_mov_b32 v9, s{TAG}")
    a(f"v_mov_b32 v11, s{TAG}")
    recaddr(MREC, False)
    a("v_lshl_add_u32 v30, v7, 3, s36")
    recaddr(MREC, True)
    a("v_lshl_add_u32 v31, v7, 3, s36")
    if o.get("nogate") and not o.get("mst"): a("s_branch L_stream2")
    a("global_store_dwordx2 v30, v[8:9], s[28:29] sc1")
    a("s_cmp_ge_u32 s31, 6")
    a("s_cbranch_scc1 L_stream2")
    a("global_store_dwordx2 v31, v[10:11], s[28:29] sc1")
    a("s_branch L_stream2")
    return wrap(a.text(), lds=LDS_BYTES), a

if __name__ == "__main__":
    name = sys.argv[1] if len(sys.argv) > 1 else "k5"
    opts = eval(sys.argv[2]) if len(sys.argv) > 2 else {}
    s, a = gen(False, opts)
    open(name + ".s", "w").write(s)
    s, a = gen(True, opts)
    open(name + "s.s", "w").write(s)
    print("nops inserted", a.nops)
```

```python
import sys
from glib import *
from asmlib import Asm

EPOCH, QREC, OREC, SREC, MREC = 0x0, 0x80000, 0x100000, 0x180000, 0x1C0000
SROW = 7168
L_FLAG, L_Q, L_H, L_ML, L_O, L_S, L_R = 0, 64, 512, 640, 1024, 7168, 11264
RS = 816
LDS_BYTES = 11264 + 8*RS
SPIN = 0x200000
LOG2E = 0x3fb8aa3b
SCALE = 0x3d93cd3a
KB, VB = 64, 160
TAG = 49

def gen(stamps=False, opts=None):
    o = dict(nt=True, qsleep=90, qretry=1, h1sleep=0, fsleep=0, kwin=4, vpre=2, vahead=2, xmap=0, warm=1, fast=1)
    o.update(opts or {})
    NT = " nt" if o["nt"] else ""
    a = Asm()
    def stamp(k):
        if stamps:
            a(f"s_memrealtime s[{64+2*k}:{65+2*k}]")
    def wave_red(op, v):
        for d in ("row_shr:1", "row_shr:2", "row_shr:4", "row_shr:8"):
            a(f"{op}_dpp v{v}, v{v}, v{v} {d} row_mask:0xf bank_mask:0xf")
        a(f"{op}_dpp v{v}, v{v}, v{v} row_bcast:15 row_mask:0xa bank_mask:0xf")
        a(f"{op}_dpp v{v}, v{v}, v{v} row_bcast:31 row_mask:0xc bank_mask:0xf")
    def tree8(groups, dests):
        for G in groups:
            for e in (0, 2, 4, 6):
                a(f"v_add_f32_dpp v{G[e]}, v{G[e]}, v{G[e]} row_shl:8 row_mask:0xf bank_mask:0x3")
        for G in groups:
            for e in (0, 2, 4, 6):
                a(f"v_add_f32_dpp v{G[e]}, v{G[e+1]}, v{G[e+1]} row_shr:8 row_mask:0xf bank_mask:0xc")
        for G in groups:
            for e in (0, 4):
                a(f"v_permlane16_swap_b32 v{G[e]}, v{G[e+2]}")
        for G in groups:
            for e in (0, 4):
                a(f"v_add_f32 v{G[e]}, v{G[e]}, v{G[e+2]}")
        for G in groups:
            a(f"v_permlane32_swap_b32 v{G[0]}, v{G[4]}")
        for G, d in zip(groups, dests):
            a(f"v_add_f32 v{d}, v{G[0]}, v{G[4]}")
    def oct_all(op, regs):
        for d in ("quad_perm:[1,0,3,2]", "quad_perm:[2,3,0,1]", "row_half_mirror"):
            for r in regs:
                a(f"{op}_dpp v{r}, v{r}, v{r} {d} row_mask:0xf bank_mask:0xf")
    def make_tag():
        a("s_waitcnt lgkmcnt(0)")
        a(f"s_mul_i32 s{TAG}, s{TAG}, 0x9E3779B1")
        a(f"s_add_u32 s{TAG}, s{TAG}, 0x7F4A7C15")
    def tagcheck(tags, acc, ok, retry, sleep=0):
        a(f"v_xor_b32 v{acc}, s{TAG}, v{tags[0]}")
        for t in tags[1:]:
            a(f"v_bitop3_b32 v{acc}, v{t}, v{acc}, s{TAG} bitop3:0xde")
        a(f"v_cmp_eq_u32 vcc, 0, v{acc}")
        a("s_cmp_eq_u64 vcc, exec")
        a(f"s_cbranch_scc1 {ok}")
        if sleep: a(f"s_sleep {sleep}")
        a("s_sub_u32 s39, s39, 1")
        a("s_cmp_lg_u32 s39, 0")
        a(f"s_cbranch_scc1 {retry}")
    def recaddr(rec, extra, dst="s36"):
        a(f"s_mul_i32 {dst}, s30, {SROW}")
        if extra:
            a("s_lshl_b32 s38, s51, 10")
            a(f"s_add_u32 {dst}, {dst}, s38")
            a("s_lshl_b32 s38, s50, 9")
            a(f"s_add_u32 {dst}, {dst}, s38")
            a(f"s_add_u32 {dst}, {dst}, {rec+4096}")
        else:
            a("s_lshl_b32 s38, s31, 9")
            a(f"s_add_u32 {dst}, {dst}, s38")
            a(f"s_add_u32 {dst}, {dst}, {rec}")

    if stamps:
        for k in range(16):
            a(f"s_mov_b64 s[{64+2*k}:{65+2*k}], 0")
    stamp(0)
    a("s_load_dwordx16 s[4:19], s[0:1], 0")
    a("s_load_dwordx8 s[20:27], s[0:1], 64")
    a("s_load_dwordx2 s[28:29], s[0:1], 96")
    a("s_cmp_ge_u32 s2, 256")
    a("s_cbranch_scc1 L_end")
    a("v_lshrrev_b32 v7, 6, v0")
    a("v_and_b32 v1, 63, v0")
    a("v_and_b32 v2, 7, v0")
    a("v_readfirstlane_b32 s32, v7")
    a("v_bfe_u32 v3, v0, 3, 3")
    if o["xmap"] == 0:
        a("s_and_b32 s30, s2, 7")
        a("s_lshl_b32 s30, s30, 2")
        a("s_bfe_u32 s33, s2, 0x20003")
        a("s_add_u32 s30, s30, s33")
        a("s_lshr_b32 s31, s2, 5")
    else:
        a("s_lshr_b32 s30, s2, 3")
        a("s_and_b32 s31, s2, 7")
    a("s_lshl_b32 s34, s30, 3")
    a("s_add_u32 s34, s34, s31")
    a("v_mul_u32_u24 v4, 384, v3")
    a("v_lshl_add_u32 v4, v2, 4, v4")
    a("v_add_u32 v4, 4096, v4")
    a("v_add_u32 v5, 9216, v4")
    a("v_add_u32 v6, 18432, v4")
    a("s_mul_i32 s35, s30, 12582912")
    a("s_mul_i32 s36, s31, 196608")
    a("s_add_u32 s35, s35, s36")
    a("s_mul_i32 s36, s32, 24576")
    a("s_add_u32 s35, s35, s36")
    a("s_add_u32 s35, s35, 11010048")
    a("v_lshl_add_u32 v7, v2, 3, v3")
    a("s_min_u32 s36, s31, 5")
    a("s_cmp_ge_u32 s36, 3")
    a("s_cselect_b32 s50, 1, 0")
    a("s_mul_i32 s51, s50, 3")
    a("s_sub_u32 s51, s36, s51")
    a("s_waitcnt lgkmcnt(0)")
    a(f"s_load_dword s{TAG}, s[28:29], {EPOCH}")
    a("s_add_u32 s6, s6, s35")
    a("s_addc_u32 s7, s7, 0")
    a("s_add_u32 s8, s8, s35")
    a("s_addc_u32 s9, s9, 0")
    a("s_cmp_lg_u32 s32, 0")
    a("s_cbranch_scc1 L_notctl")
    a("s_mul_i32 s37, s31, 160")
    a("v_lshlrev_b32 v13, 4, v1")
    a("global_load_dwordx4 v[14:17], v13, s[4:5]")
    a("v_lshlrev_b32 v13, 2, v1")
    a("global_load_dword v18, v13, s[4:5] offset:1024")
    a("v_mul_u32_u24 v13, 20, v3")
    a("v_add_u32 v13, s37, v13")
    a("global_load_dwordx4 v[20:23], v13, s[4:5]")
    a("global_load_dword v24, v13, s[4:5] offset:16")
    a("s_mul_i32 s36, s31, 983040")
    a("s_mul_i32 s38, s30, 384")
    a("s_add_u32 s36, s36, s38")
    a("s_add_u32 s10, s10, s36")
    a("s_addc_u32 s11, s11, 0")
    a("s_mul_i32 s36, s31, 245760")
    a("s_mul_i32 s38, s30, 96")
    a("s_add_u32 s36, s36, s38")
    a("s_add_u32 s16, s16, s36")
    a("s_addc_u32 s17, s17, 0")
    a("v_mul_u32_u24 v25, 122880, v3")
    a("v_lshl_add_u32 v25, v2, 4, v25")
    a("v_min_u32 v26, 5, v2")
    a("v_mul_u32_u24 v27, 30720, v3")
    a("v_lshl_add_u32 v26, v26, 4, v27")
    for g in range(10):
        for t in range(3):
            r = 64 + (g*4+t)*4
            a(f"global_load_dwordx4 v[{r}:{r+3}], v25, s[10:11] offset:{128*t}{NT}")
        r = 64 + (g*4+3)*4
        a(f"global_load_dwordx4 v[{r}:{r+3}], v26, s[16:17]{NT}")
        if g < 9:
            a("s_add_u32 s10, s10, 12288")
            a("s_addc_u32 s11, s11, 0")
            a("s_add_u32 s16, s16, 3072")
            a("s_addc_u32 s17, s17, 0")
    a("s_barrier")
    a("s_branch L_ctl2")
    a.label("L_notctl", pad=False)
    a("s_cmp_eq_u32 s32, 7")
    a("s_cbranch_scc1 L_poll")
    make_tag()
    a("s_barrier")
    def kvload(base, sb, g, t):
        r = base + (g*3+t)*4
        a(f"global_load_dwordx4 v[{r}:{r+3}], v{4+g//3}, s[{sb}:{sb+1}] offset:{(g%3)*3072+128*t-4096}{NT}")
    def kissue(win):
        stamp(2)
        n = 0
        for g in range(8):
            for t in range(3):
                if win and n >= win: a(f"s_waitcnt vmcnt({win-1})")
                kvload(KB, 6, g, t); n += 1
    a.label("L_stream", pad=False)
    kissue(o["kwin"])
    a.label("L_stream2", pad=False)
    VPRE = o["vpre"]
    for g in range(VPRE):
        for t in range(3): kvload(VB, 8, g, t)
    stamp(3)
    for r in range(32, 64):
        a(f"v_mov_b32 v{r}, 0")
    a("s_mov_b32 s42, 0xaaaaaaaa"); a("s_mov_b32 s43, 0xaaaaaaaa")
    a("s_mov_b32 s44, 0xcccccccc"); a("s_mov_b32 s45, 0xcccccccc")
    a(f"s_mov_b32 s39, {SPIN}")
    a("v_mov_b32 v31, 0")
    a.label("L_wq")
    a(f"ds_read_b32 v8, v31 offset:{L_FLAG}")
    a("s_waitcnt lgkmcnt(0)")
    a("v_readfirstlane_b32 s52, v8")
    a("s_cmp_lg_u32 s52, 0")
    a("s_cbranch_scc1 L_gotq")
    a("s_sleep 2")
    a("s_sub_u32 s39, s39, 1")
    a("s_cmp_lg_u32 s39, 0")
    a("s_cbranch_scc1 L_wq")
    a.label("L_gotq", pad=False)
    stamp(4)
    a("v_lshlrev_b32 v31, 4, v2")
    for t in range(3):
        a(f"ds_read_b128 v[{8+4*t}:{11+4*t}], v31 offset:{L_Q+128*t}")
    a("s_waitcnt lgkmcnt(0)")
    for g in range(8):
        a(f"s_waitcnt vmcnt({24-3*(g+1)+3*VPRE})")
        for t in range(3):
            for i in range(4):
                a(f"v_dot2c_f32_bf16 v{32+g}, v{8+4*t+i}, v{KB+(g*3+t)*4+i}")
    stamp(5)
    for g in range(4):
        a(f"v_add_f32_dpp v{32+g}, v{32+g}, v{32+g} row_shl:4 row_mask:0xf bank_mask:0x5")
    for g in range(4):
        a(f"v_add_f32_dpp v{32+g}, v{36+g}, v{36+g} row_shr:4 row_mask:0xf bank_mask:0xa")
    for g in range(4):
        a(f"v_add_f32_dpp v{32+g}, v{32+g}, v{32+g} quad_perm:[2,3,0,1] row_mask:0xf bank_mask:0xf")
    a("v_cndmask_b32 v32, v32, v34, s[44:45]")
    a("v_cndmask_b32 v33, v33, v35, s[44:45]")
    a("v_add_f32_dpp v32, v32, v32 quad_perm:[1,0,3,2] row_mask:0xf bank_mask:0xf")
    a("v_add_f32_dpp v33, v33, v33 quad_perm:[1,0,3,2] row_mask:0xf bank_mask:0xf")
    a("v_cndmask_b32 v32, v32, v33, s[42:43]")
    a("v_cvt_pk_bf16_f32 v32, 0, v32")
    a(f"v_mul_f32 v32, {hex(SCALE)}, v32")
    a("v_cvt_pk_bf16_f32 v32, 0, v32")
    a(f"v_mul_f32 v32, {hex(LOG2E)}, v32")
    a("v_mov_b32 v33, v32")
    wave_red("v_max_f32", 33)
    a("v_readlane_b32 s46, v33, 63")
    a("v_subrev_f32 v32, s46, v32")
    a("v_exp_f32 v32, v32")
    a("v_mov_b32 v33, v32")
    a("v_cvt_pk_bf16_f32 v34, 0, v32")
    PH = list(range(8, 16)); PL = [16,17,18,19,20,21,22,23]
    for g in range(8):
        a(f"v_mov_b32_dpp v{PH[g]}, v34 row_newbcast:{g} row_mask:0xf bank_mask:0x3")
        a(f"v_mov_b32_dpp v{PH[g]}, v34 row_newbcast:{8+g} row_mask:0xf bank_mask:0xc")
    for g in range(8):
        a(f"v_lshrrev_b32 v{PL[g]}, 16, v{PH[g]}")
    WO = 96
    queue = [("v", g, t) for g in range(VPRE) for t in range(3)]
    pend = [("v", g, t) for g in range(VPRE, 8) for t in range(3)] + [("w", 8, r) for r in range(3)]
    def h1loads(b=64):
        a(f"global_load_dwordx4 v[{b}:{b+3}], v28, s[28:29] sc1")
        a(f"global_load_dwordx4 v[{b+4}:{b+7}], v29, s[28:29] offset:1024 sc1")
    def issue(op):
        k, x, t = op
        if k == "v": kvload(VB, 8, x, t)
        else:
            a(f"global_load_dwordx4 v[{WO+4*t}:{WO+4*t+3}], v24, s[12:13] offset:{1280*t}{NT}")
        queue.append(op)
    for g in range(8):
        want = g + o["vahead"]
        while pend and pend[0][1] <= want:
            issue(pend.pop(0))
        if g == 0:
            wave_red("v_add_f32", 33)
            a("s_mul_i32 s36, s30, 245760")
            a("s_mul_i32 s38, s32, 30720")
            a("s_add_u32 s36, s36, s38")
            a("v_mul_u32_u24 v24, 3840, v3")
            a("v_lshl_add_u32 v24, v2, 4, v24")
            a("v_add_u32 v24, s36, v24")
            a("s_mul_i32 s36, s51, 1280")
            a("s_lshl_b32 s38, s50, 7")
            a("s_add_u32 s36, s36, s38")
            a("s_add_u32 s36, s36, 1024")
            a("v_add_u32 v25, s36, v24")
            a("s_lshl_b32 s38, s31, 7")
            a("v_add_u32 v24, s38, v24")
            a("v_readlane_b32 s47, v33, 63")
            a("v_mov_b32 v26, s46"); a("v_mov_b32 v27, s47")
            a("s_lshl_b32 s36, s32, 3")
            a("v_mov_b32 v30, s36")
            a(f"ds_write_b64 v30, v[26:27] offset:{L_ML}")
            a("s_mul_i32 s36, s32, 768")
            a("v_lshl_add_u32 v31, v7, 2, s36")
            a("s_lshl_b32 s48, s34, 11")
            a("s_lshl_b32 s36, s30, 14")
            a("s_lshl_b32 s38, s32, 11")
            a("s_add_u32 s36, s36, s38")
            a(f"s_add_u32 s36, s36, {OREC}")
            a("v_lshl_add_u32 v28, v1, 4, s36")
            a("v_min_u32 v30, 32, v1")
            a("v_lshl_add_u32 v29, v30, 4, s36")
            a(f"s_mul_i32 s36, s32, {RS}")
            a(f"s_add_u32 s36, s36, {L_R}")
            a("v_lshl_add_u32 v72, v1, 3, s36")
            a("v_lshl_add_u32 v73, v30, 3, s36")
            a(f"v_mul_u32_u24 v74, {RS}, v2")
            a("v_mul_u32_u24 v75, 12, v3")
            a("s_mul_i32 s36, s32, 96")
            a("v_add3_u32 v75, v75, v74, s36")
            a("s_cmp_eq_u32 s51, 1")
            a("s_cselect_b64 s[54:55], -1, 0")
            a("s_cmp_eq_u32 s51, 2")
            a("s_cselect_b64 s[56:57], -1, 0")
            a("s_lshl_b32 s36, s32, 9")
            a("v_lshl_add_u32 v76, v7, 2, s36")
            for r in range(112, 128):
                a(f"v_mov_b32 v{r}, 0")
            if o["warm"]:
                h1loads(); queue += [("x", 0, 0), ("x", 0, 1)]
        last = max(i for i, q in enumerate(queue) if q[0] == "v" and q[1] == g)
        a(f"s_waitcnt vmcnt({len(queue)-1-last})")
        if g == 7:
            while pend: issue(pend.pop(0))
            a("s_cmp_ge_u32 s31, 6")
            a("s_cbranch_scc1 L_noex")
            a(f"global_load_dwordx4 v[{WO+12}:{WO+15}], v25, s[12:13]{NT}")
            a.label("L_noex", pad=False)
        for t in range(3):
            for i in range(4):
                r = VB+(g*3+t)*4+i
                a(f"v_dot2c_f32_bf16 v{40+8*t+2*i}, v{PL[g]}, v{r}")
                a(f"v_dot2c_f32_bf16 v{41+8*t+2*i}, v{PH[g]}, v{r}")
    stamp(6)
    tree8([list(range(40+8*t, 48+8*t)) for t in range(3)], [40, 48, 56])
    for t in range(3):
        a(f"ds_write_b32 v31, v{40+8*t} offset:{L_O+256*t}")
    a("s_cmp_eq_u32 s32, 7")
    a("s_cbranch_scc1 L_gate")
    a.label("L_b2", pad=False)
    a("s_waitcnt lgkmcnt(0)")
    a("s_barrier")
    stamp(7)
    if o.get("notail"): a("s_branch L_done")
    a("s_cmp_ge_u32 s32, 4")
    a("s_cbranch_scc1 L_hop1")
    a("v_mov_b32 v31, 0")
    for k in range(4):
        a(f"ds_read_b128 v[{8+4*k}:{11+4*k}], v31 offset:{L_ML+16*k}")
    a("v_min_u32 v30, 191, v0")
    a("v_lshlrev_b32 v30, 2, v30")
    for k in range(4):
        a(f"ds_read2st64_b32 v[{32+2*k}:{33+2*k}], v30 offset0:{L_O//256+6*k} offset1:{L_O//256+6*k+3}")
    a(f"s_add_u32 s36, s48, {OREC}")
    a("v_lshl_add_u32 v30, v30, 1, s36")
    a("s_waitcnt lgkmcnt(0)")
    a("v_max3_f32 v24, v8, v10, v12")
    a("v_max3_f32 v25, v14, v16, v18")
    a("v_max3_f32 v24, v24, v20, v22")
    a("v_max_f32 v24, v24, v25")
    for k in range(8):
        a(f"v_sub_f32 v{8+2*k}, v{8+2*k}, v24")
    for k in range(8):
        a(f"v_exp_f32 v{8+2*k}, v{8+2*k}")
    a("s_cmp_eq_u32 s32, 3")
    a("s_cbranch_scc1 L_mlpub")
    a("v_mul_f32 v26, v8, v32")
    a("v_mul_f32 v27, v10, v33")
    for k in range(2, 8):
        a(f"v_fmac_f32 v{26+(k&1)}, v{8+2*k}, v{32+k}")
    a("v_add_f32 v26, v26, v27")
    a(f"v_mov_b32 v27, s{TAG}")
    a("s_cmp_eq_u32 s52, 2")
    a("s_cbranch_scc0 L_opub_far")
    a("global_store_dwordx2 v30, v[26:27], s[28:29]")
    a("s_branch L_hop1")
    a.label("L_opub_far", pad=False)
    a("global_store_dwordx2 v30, v[26:27], s[28:29] sc1")
    a("s_branch L_hop1")
    a.label("L_mlpub")
    a("v_mul_f32 v26, v8, v9")
    a("v_mul_f32 v27, v10, v11")
    for k in range(2, 8):
        a(f"v_fmac_f32 v{26+(k&1)}, v{8+2*k}, v{9+2*k}")
    a("v_add_f32 v26, v26, v27")
    a(f"v_mov_b32 v25, s{TAG}")
    a(f"v_mov_b32 v27, s{TAG}")
    a(f"s_add_u32 s36, s48, {OREC+1536}")
    a("v_lshl_add_u32 v30, v1, 4, s36")
    a("s_mov_b64 exec, 0xff")
    a("s_cmp_eq_u32 s52, 2")
    a("s_cbranch_scc0 L_mlpub_far")
    a("global_store_dwordx4 v30, v[24:27], s[28:29]")
    a("s_branch L_mlpub_done")
    a.label("L_mlpub_far", pad=False)
    a("global_store_dwordx4 v30, v[24:27], s[28:29] sc1")
    a.label("L_mlpub_done", pad=False)
    a("s_mov_b64 exec, -1")
    a.label("L_hop1", pad=False)
    stamp(8)
    a(f"s_mov_b32 s39, {SPIN}")
    a.label("L_h1", pad=False)
    h1loads()
    a("s_waitcnt vmcnt(0)")
    tagcheck([65, 67, 69, 71], 20, "L_h1ok", "L_h1", o["h1sleep"])
    a.label("L_h1ok", pad=False)
    a(f"ds_write2_b32 v72, v64, v66 offset0:0 offset1:1".replace("v72,", "v72,"))
    a(f"ds_write2_b32 v73, v68, v70 offset0:128 offset1:129")
    stamp(9)
    a("s_waitcnt lgkmcnt(0)")
    a("s_barrier")
    a(f"ds_read_b64 v[16:17], v74 offset:{L_R+768}")
    a(f"ds_read_b32 v8, v75 offset:{L_R}")
    a(f"ds_read_b32 v10, v75 offset:{L_R+4}")
    a(f"ds_read_b32 v12, v75 offset:{L_R+8}")
    a("s_waitcnt lgkmcnt(3)" if not stamps else "s_waitcnt lgkmcnt(0)")
    a("v_max_f32_dpp v20, v16, v16 quad_perm:[1,0,3,2] row_mask:0xf bank_mask:0xf")
    a("v_max_f32_dpp v20, v20, v20 quad_perm:[2,3,0,1] row_mask:0xf bank_mask:0xf")
    a("v_max_f32_dpp v20, v20, v20 row_half_mirror row_mask:0xf bank_mask:0xf")
    a("v_sub_f32 v16, v16, v20")
    a("v_exp_f32 v16, v16")
    a("s_waitcnt lgkmcnt(0)")
    for r in (17, 8, 10, 12):
        a(f"v_mul_f32 v{r}, v{r}, v16")
    oct_all("v_add_f32", [17, 8, 10, 12])
    a("v_rcp_f32 v17, v17")
    for r in (8, 10, 12):
        a(f"v_mul_f32 v{r}, v{r}, v17")
    a("v_cndmask_b32 v14, v8, v10, s[54:55]")
    a("v_cndmask_b32 v14, v14, v12, s[56:57]")
    for r in (8, 10, 12, 14):
        a(f"v_cvt_pk_bf16_f32 v{r+1}, v{r}, 0")
        a(f"v_cvt_pk_bf16_f32 v{r}, 0, v{r}")
    for g in range(3):
        for i in range(4):
            a(f"v_dot2c_f32_bf16 v{112+2*i}, v{9+2*g}, v{WO+4*g+i}")
            a(f"v_dot2c_f32_bf16 v{113+2*i}, v{8+2*g}, v{WO+4*g+i}")
    for i in range(4):
        a(f"v_dot2c_f32_bf16 v{120+2*i}, v15, v{WO+12+i}")
        a(f"v_dot2c_f32_bf16 v{121+2*i}, v14, v{WO+12+i}")
    tree8([list(range(112, 120)), list(range(120, 128))], [112, 120])
    a(f"ds_write2st64_b32 v76, v112, v120 offset0:{L_S//256} offset1:{L_S//256+1}")
    a("s_waitcnt lgkmcnt(0)")
    a("s_barrier")
    stamp(10)
    a("s_cmp_eq_u32 s32, 7")
    a("s_cbranch_scc1 L_final")
    a("s_cmp_eq_u32 s32, 1")
    a("s_cbranch_scc1 L_spubx")
    a("s_cmp_lg_u32 s32, 0")
    a("s_cbranch_scc1 L_done")
    def pub64(offs, rec, extra):
        a("v_lshlrev_b32 v30, 2, v1")
        prs = [offs[i:i+2] for i in range(0, len(offs), 2)]
        for k, (x, y) in enumerate(prs):
            a(f"ds_read2st64_b32 v[{32+2*k}:{33+2*k}], v30 offset0:{x//256} offset1:{y//256}")
        recaddr(rec, extra)
        a("v_lshl_add_u32 v30, v1, 3, s36")
        a("s_waitcnt lgkmcnt(0)")
        regs = list(range(32, 32+len(offs)))
        while len(regs) > 1:
            nxt = []
            for i in range(0, len(regs)-1, 2):
                a(f"v_add_f32 v{regs[i]}, v{regs[i]}, v{regs[i+1]}"); nxt.append(regs[i])
            if len(regs) % 2: nxt.append(regs[-1])
            regs = nxt
        a(f"v_mov_b32 v33, s{TAG}")
        a("global_store_dwordx2 v30, v[32:33], s[28:29] sc1")
    pub64([L_S+512*k for k in range(8)], SREC, False)
    a("s_branch L_done")
    a.label("L_spubx", pad=False)
    a("s_cmp_ge_u32 s31, 6")
    a("s_cbranch_scc1 L_done")
    pub64([L_S+512*k+256 for k in range(8)], SREC, True)
    a("s_branch L_done")
    def red2(b):
        a(f"v_add_f32 v{b+4}, v{b+4}, v{b+8}")
        a(f"v_add_f32 v{b+6}, v{b+6}, v{b+10}")
        a(f"v_add_f32 v{b}, v{b}, v{b+4}")
        a(f"v_add_f32 v{b+2}, v{b+2}, v{b+6}")
        a(f"v_add_f32_dpp v{b}, v{b}, v{b} row_shl:4 row_mask:0xf bank_mask:0x5")
        a(f"v_add_f32_dpp v{b}, v{b+2}, v{b+2} row_shr:4 row_mask:0xf bank_mask:0xa")
        a(f"v_add_f32_dpp v{b}, v{b}, v{b} row_ror:8 row_mask:0xf bank_mask:0xf")
        a(f"v_add_f32_dpp v{b}, v{b}, v{b} quad_perm:[2,3,0,1] row_mask:0xf bank_mask:0xf")
        a(f"v_mov_b32 v{b+1}, v{b}")
        a(f"v_permlane16_swap_b32 v{b}, v{b+1}")
        a(f"v_add_f32 v{b}, v{b}, v{b+1}")
        a(f"v_mov_b32 v{b+1}, v{b}")
        a(f"v_permlane32_swap_b32 v{b}, v{b+1}")
        a(f"v_add_f32 v{b}, v{b}, v{b+1}")
    def preset(b):
        for r in range(b+4, b+12, 2):
            a(f"v_mov_b32 v{r}, 0")
            a(f"v_mov_b32 v{r+1}, s{TAG}")
    def pollx4(name, b, addr, acc):
        a(f"s_mov_b32 s39, {SPIN}")
        a.label(name, pad=False)
        a(f"global_load_dwordx4 v[{b}:{b+3}], v{addr}, s[28:29] sc1")
        a("s_cmp_lt_u32 s2, 128")
        a(f"s_cbranch_scc1 {name}w")
        a(f"global_load_dwordx4 v[{b+4}:{b+7}], v{addr}, s[28:29] offset:1024 sc1")
        a(f"global_load_dwordx4 v[{b+8}:{b+11}], v{addr}, s[28:29] offset:2048 sc1")
        a.label(name + "w", pad=False)
        a("s_waitcnt vmcnt(0)")
        tagcheck(list(range(b+1, b+12, 2)), acc, name + "ok", name, o["fsleep"])
        a.label(name + "ok", pad=False)
    a.label("L_final", pad=False)
    a("s_cmp_ge_u32 s2, 160")
    a("s_cbranch_scc1 L_done")
    pollx4("L_ps", 144, 129, 14)
    stamp(12)
    red2(144)
    a("v_cvt_pk_bf16_f32 v16, 0, v144")
    a("v_mul_f32 v16, v16, v131")
    a("v_cvt_pk_bf16_f32 v16, 0, v16")
    a("v_add_f32 v16, v130, v16")
    a("v_cvt_pk_bf16_f32 v16, v16, v16")
    a("s_mov_b64 exec, 0x33")
    a("global_store_short v128, v16, s[24:25]")
    a("s_cmp_lg_u32 s2, 0")
    a("s_cbranch_scc1 L_done2")
    a("s_mov_b64 exec, 1")
    a(f"v_mov_b32 v16, {EPOCH}")
    a(f"v_mov_b32 v17, s{TAG}")
    a("global_store_dword v16, v17, s[28:29]")
    a.label("L_done2", pad=False)
    a("s_mov_b64 exec, -1")
    a.label("L_done", pad=False)
    if stamps and o.get("dbgst"):
        a("s_waitcnt vmcnt(0)")
        stamp(1)
        a("s_waitcnt lgkmcnt(0)")
        a("s_not_b32 s64, s64")
        a("v_mov_b32 v2, 0")
        for k in range(16):
            a(f"v_writelane_b32 v2, s{64+2*k}, {k}")
        a("v_lshlrev_b32 v0, 2, v1")
        a("s_mov_b64 exec, 0xffff")
        a("global_atomic_umax v0, v2, s[26:27] sc1")
    elif stamps:
        a("s_waitcnt vmcnt(0)")
        stamp(1)
        a("s_lshl_b32 s36, s2, 3")
        a("s_add_u32 s36, s36, s32")
        a("s_lshl_b32 s36, s36, 7")
        a("s_add_u32 s36, s36, 0x4000000")
        a("v_mov_b32 v0, s36")
        a("s_waitcnt lgkmcnt(0)")
        a("s_mov_b64 exec, 1")
        for k in range(16):
            a(f"v_mov_b32 v{2+2*k}, s{64+2*k}")
            a(f"v_mov_b32 v{3+2*k}, s{65+2*k}")
            a(f"global_store_dwordx2 v0, v[{2+2*k}:{3+2*k}], s[28:29] offset:{8*k}")
    a.label("L_end", pad=False)
    a("s_endpgm")
    a.label("L_gate")
    if o.get("nogate"): a("s_branch L_b2")
    a("s_cmp_ge_u32 s2, 160")
    a("s_cbranch_scc1 L_b2")
    a("v_lshrrev_b32 v129, 1, v1")
    a(f"v_mul_u32_u24 v129, {SROW}, v129")
    a("v_and_b32 v30, 1, v1")
    a("v_lshl_add_u32 v129, v30, 4, v129")
    a("s_lshl_b32 s36, s2, 5")
    a(f"s_add_u32 s36, s36, {SREC}")
    a("v_add_u32 v129, s36, v129")
    a(f"v_add_u32 v27, {MREC-SREC}, v129")
    a("v_bfe_u32 v128, v1, 2, 1")
    a("v_lshl_add_u32 v128, v30, 1, v128")
    a("s_lshl_b32 s36, s2, 2")
    a("v_add_u32 v128, s36, v128")
    a("v_lshlrev_b32 v128, 1, v128")
    a("global_load_ushort v130, v128, s[4:5]")
    a("global_load_ushort v26, v128, s[22:23]")
    preset(132); preset(144)
    pollx4("L_pm", 132, 27, 14)
    red2(132)
    a("v_lshlrev_b32 v26, 16, v26")
    a("v_lshlrev_b32 v130, 16, v130")
    a("v_cvt_pk_bf16_f32 v8, 0, v132")
    a("v_add_f32 v8, v8, v26")
    a("v_cvt_pk_bf16_f32 v8, 0, v8")
    a(f"v_mul_f32 v9, {hex(LOG2E | 0x80000000)}, v8")
    a("v_exp_f32 v9, v9")
    a("v_add_f32 v9, 1.0, v9")
    a("v_rcp_f32 v9, v9")
    a("v_mul_f32 v8, v8, v9")
    a("v_cvt_pk_bf16_f32 v131, 0, v8")
    stamp(11)
    a("s_branch L_b2")
    a.label("L_ctl2")
    make_tag()
    a("s_getreg_b32 s53, hwreg(HW_REG_XCC_ID)")
    a("s_and_b32 s53, s53, 7")
    a("s_lshl_b32 s53, s53, 25")
    a("s_add_u32 s53, s53, 0x3f800000")
    a("s_waitcnt vmcnt(40)")
    stamp(13)
    E = list(range(44, 54))
    for i in range(5):
        a(f"v_lshlrev_b32 v{E[2*i]}, 16, v{14+i}")
        a(f"v_and_b32 v{E[2*i+1]}, 0xffff0000, v{14+i}")
    a(f"v_add_f32 v8, v{E[0]}, v{E[1]}")
    a(f"v_add_f32 v9, v{E[2]}, v{E[3]}")
    for i in range(4, 10):
        a(f"v_add_f32 v{8+(i&1)}, v{8+(i&1)}, v{E[i]}")
    a("v_add_f32 v8, v8, v9")
    wave_red("v_add_f32", 8)
    a("v_readlane_b32 s36, v8, 63")
    a("v_mov_b32 v10, 0x3acccccd")
    a("v_mul_f32 v11, s36, v10")
    for i in range(10):
        a(f"v_sub_f32 v{E[i]}, v{E[i]}, v11")
    a(f"v_mul_f32 v8, v{E[0]}, v{E[0]}")
    a(f"v_mul_f32 v9, v{E[1]}, v{E[1]}")
    for i in range(2, 10):
        a(f"v_fmac_f32 v{8+(i&1)}, v{E[i]}, v{E[i]}")
    a("v_add_f32 v8, v8, v9")
    wave_red("v_add_f32", 8)
    a("v_readlane_b32 s36, v8, 63")
    a("v_mul_f32 v12, s36, v10")
    a("v_cvt_pk_bf16_f32 v11, 0, v11")
    a("v_cvt_pk_bf16_f32 v12, 0, v12")
    a("v_add_f32 v12, 0x3727c5ac, v12")
    a("v_cvt_pk_bf16_f32 v12, 0, v12")
    a("v_sqrt_f32 v12, v12")
    a("v_cvt_pk_bf16_f32 v12, 0, v12")
    a("v_rcp_f32 v13, v12")
    for i in range(5):
        a(f"v_lshlrev_b32 v{E[2*i]}, 16, v{20+i}")
        a(f"v_and_b32 v{E[2*i+1]}, 0xffff0000, v{20+i}")
    for i in range(10):
        a(f"v_sub_f32 v{E[i]}, v{E[i]}, v11")
    for i in range(10):
        a(f"v_cvt_pk_bf16_f32 v{E[i]}, 0, v{E[i]}")
    for i in range(10):
        a(f"v_mul_f32 v{224+i}, v{E[i]}, v13")
    for i in range(10):
        a(f"v_fma_f32 v{E[i]}, -v{224+i}, v12, v{E[i]}")
    for i in range(10):
        a(f"v_fmac_f32 v{224+i}, v{E[i]}, v13")
    for i in range(10):
        a(f"v_cvt_pk_bf16_f32 v{234+i}, v{224+i}, 0")
        a(f"v_cvt_pk_bf16_f32 v{224+i}, 0, v{224+i}")
    for r in range(32, 64):
        a(f"v_mov_b32 v{r}, 0")
    for r in (9, 11, 13, 15):
        a(f"v_mov_b32 v{r}, s{TAG}")
    a("v_mov_b32 v17, s53")
    a("v_cmp_eq_u32 vcc, 7, v2")
    for g in range(10):
        a(f"s_waitcnt vmcnt({40-4*(g+1)})")
        for t in range(4):
            for i in range(4):
                r = 64+(g*4+t)*4+i
                a(f"v_dot2c_f32_bf16 v{32+8*t+2*i}, v{234+g}, v{r}")
                a(f"v_dot2c_f32_bf16 v{33+8*t+2*i}, v{224+g}, v{r}")
    stamp(15)
    tree8([list(range(32+8*t, 40+8*t)) for t in range(4)], [8, 10, 12, 14])
    a("v_cndmask_b32 v14, v14, v17, vcc")
    a("s_lshl_b32 s36, s34, 11")
    a(f"s_add_u32 s36, s36, {QREC}")
    a("v_lshl_add_u32 v16, v1, 4, s36")
    if not o.get("noq"):
        QF = o.get("qst", "sc1")
        a(f"global_store_dwordx4 v16, v[8:11], s[28:29] {QF}")
        a(f"global_store_dwordx4 v16, v[12:15], s[28:29] offset:1024 {QF}")
    stamp(14)
    a("s_nop 2")
    if o.get("w0win") is not None:
        kissue(o["w0win"])
        a("s_branch L_stream2")
    else:
        a("s_branch L_stream")
    a.label("L_poll")
    a("v_mov_b32 v8, 0")
    a(f"ds_write_b32 v8, v8 offset:{L_FLAG}")
    a("v_min_u32 v9, 5, v2")
    a("v_lshl_add_u32 v9, v9, 3, v3")
    a("s_mul_i32 s36, s30, 96")
    a("v_lshl_add_u32 v9, v9, 1, s36")
    make_tag()
    a("s_barrier")
    a("s_setprio 3")
    a("global_load_ushort v28, v9, s[18:19]")
    if o.get("touch"):
        a("v_and_b32 v10, 1, v1")
        a("s_sub_u32 s36, s8, 172032")
        a("s_subb_u32 s37, s9, 0")
        a("v_mul_u32_u24 v11, 196480, v10")
        a(f"global_load_dword v12, v11, s[36:37]{NT}")
        a("s_mul_i32 s38, s30, 245760")
        a("v_mul_u32_u24 v11, 245632, v10")
        a("v_add_u32 v11, s38, v11")
        a(f"global_load_dword v13, v11, s[12:13]{NT}")
        a("v_mov_b32 v11, 0")
        a(f"global_load_dword v15, v11, s[22:23]{NT}")
        a(f"global_load_dword v16, v11, s[24:25]{NT}")
        a(f"global_load_dword v17, v11, s[28:29]{NT}")
    a("s_mul_i32 s36, s30, 61440")
    a("v_mul_u32_u24 v31, 1280, v3")
    a("v_lshl_add_u32 v31, v2, 4, v31")
    a("v_add_u32 v31, s36, v31")
    a("s_lshl_b32 s38, s31, 7")
    a("v_add_u32 v30, s38, v31")
    for g in range(6):
        if g: a("v_add_u32 v30, 10240, v30")
        a(f"global_load_dwordx4 v[{160+4*g}:{163+4*g}], v30, s[20:21]{NT}")
    a("s_mul_i32 s36, s51, 20480")
    a("s_lshl_b32 s38, s50, 7")
    a("s_add_u32 s36, s36, s38")
    a("s_add_u32 s36, s36, 1024")
    a("v_add_u32 v30, s36, v31")
    a(f"global_load_dwordx4 v[184:187], v30, s[20:21]{NT}")
    a("v_add_u32 v30, 10240, v30")
    a(f"global_load_dwordx4 v[188:191], v30, s[20:21]{NT}")
    a("s_getreg_b32 s53, hwreg(HW_REG_XCC_ID)")
    a("s_and_b32 s53, s53, 7")
    a("s_lshl_b32 s53, s53, 25")
    a("s_add_u32 s53, s53, 0x41000000")
    for r in range(32, 48):
        a(f"v_mov_b32 v{r}, 0")
    a("s_lshl_b32 s36, s30, 14")
    a(f"s_add_u32 s36, s36, {QREC+4096}")
    a("v_lshl_add_u32 v9, v1, 4, s36")
    a("v_add_u32 v10, 8192, v9")
    a(f"s_mov_b32 s39, {SPIN}")
    n = o["qsleep"]
    while n > 0:
        a(f"s_sleep {min(n,127)}"); n -= 127
    stamp(13)
    if o.get("noq") or o.get("noqg"): a("s_branch L_pqok")
    a.label("L_pq")
    for jp in range(8):
        for hf in range(2):
            r = 64+8*jp+4*hf
            a(f"global_load_dwordx4 v[{r}:{r+3}], v{9+jp//4}, s[28:29] offset:{(jp%4)*2048+hf*1024-4096} sc1")
    a("s_waitcnt vmcnt(0)")
    tagcheck(list(range(65, 128, 2)), 8, "L_pqok", "L_pq", o["qretry"])
    a.label("L_pqok", pad=False)
    stamp(14)
    for lvl in (1, 2, 4):
        for jp in range(0, 8, 2*lvl):
            for t in range(4):
                a(f"v_add_f32 v{64+8*jp+2*t}, v{64+8*jp+2*t}, v{64+8*(jp+lvl)+2*t}")
    a("v_lshlrev_b32 v9, 1, v7")
    for t in range(3):
        a(f"v_cvt_pk_bf16_f32 v{64+2*t}, v{64+2*t}, v{64+2*t}")
        a(f"ds_write_b16 v9, v{64+2*t} offset:{L_Q+128*t}")
    a("v_readlane_b32 s36, v70, 7")
    a("s_cmp_eq_u32 s36, s53")
    a(f"s_cselect_b32 s36, {2 if o['fast'] else 1}, 1")
    a("v_mov_b32 v8, 0")
    a("v_mov_b32 v10, s36")
    a("s_waitcnt lgkmcnt(0)")
    a(f"ds_write_b32 v8, v10 offset:{L_FLAG}")
    a("s_setprio 0")
    a("v_lshlrev_b32 v28, 16, v28")
    a("v_cvt_pk_bf16_f32 v70, 0, v70")
    a("v_add_f32 v70, v70, v28")
    a("v_cvt_pk_bf16_f32 v70, 0, v70")
    a("v_max_f32 v70, 0, v70")
    a("v_mul_f32 v70, v70, v70")
    a("v_cvt_pk_bf16_f32 v70, v70, v70")
    a(f"ds_write_b16 v9, v70 offset:{L_H}")
    a("v_lshlrev_b32 v9, 1, v3")
    a("s_lshl_b32 s36, s51, 5")
    a("v_add_u32 v10, s36, v9")
    a("s_waitcnt lgkmcnt(0)")
    for g in range(6):
        a(f"ds_read_u16 v{12+g}, v9 offset:{L_H+16*g}")
    a(f"ds_read_u16 v18, v10 offset:{L_H}")
    a(f"ds_read_u16 v19, v10 offset:{L_H+16}")
    kissue(0)
    a("s_waitcnt lgkmcnt(0)")
    for g in range(8):
        a(f"v_lshlrev_b32 v{20+g}, 16, v{12+g}")
    for g in range(8):
        acc = 32 if g < 6 else 40
        for i in range(4):
            a(f"v_dot2c_f32_bf16 v{acc+2*i}, v{12+g}, v{160+4*g+i}")
            a(f"v_dot2c_f32_bf16 v{acc+1+2*i}, v{20+g}, v{160+4*g+i}")
    tree8([list(range(32, 40)), list(range(40, 48))], [8, 10])
    a(f"v_mov_b32 v9, s{TAG}")
    a(f"v_mov_b32 v11, s{TAG}")
    recaddr(MREC, False)
    a("v_lshl_add_u32 v30, v7, 3, s36")
    recaddr(MREC, True)
    a("v_lshl_add_u32 v31, v7, 3, s36")
    if o.get("nogate") and not o.get("mst"): a("s_branch L_stream2")
    a("global_store_dwordx2 v30, v[8:9], s[28:29] sc1")
    a("s_cmp_ge_u32 s31, 6")
    a("s_cbranch_scc1 L_stream2")
    a("global_store_dwordx2 v31, v[10:11], s[28:29] sc1")
    a("s_branch L_stream2")
    return wrap(a.text(), lds=LDS_BYTES), a

if __name__ == "__main__":
    name = sys.argv[1] if len(sys.argv) > 1 else "k5"
    opts = eval(sys.argv[2]) if len(sys.argv) > 2 else {}
    s, a = gen(False, opts)
    open(name + ".s", "w").write(s)
    s, a = gen(True, opts)
    open(name + "s.s", "w").write(s)
    print("nops inserted", a.nops)
```
